```python
import torch

def _softmax(x, axis=-1):
    return torch.softmax(x, dim=axis)
def _gelu(x):
    return torch.nn.functional.gelu(x, approximate="tanh")
def _silu(x):
    return torch.nn.functional.silu(x)
def _sigmoid(x):
    return torch.sigmoid(x)
def _layernorm(x, axis=-1, eps=1e-5):
    m = x.mean(dim=axis, keepdim=True)
    v = x.var(dim=axis, keepdim=True, unbiased=False)
    return (x - m) / torch.sqrt(v + eps)
def _scatter_add(tgt, idx, src, axis=0):
    return tgt.clone().index_add_(axis, idx, src)
def _segment_sum(src, seg, n):
    out = torch.zeros((n,) + src.shape[1:], dtype=src.dtype)
    return out.index_add_(0, seg, src)
def _pad(x, pw):
    flat = tuple(v for pair in reversed(pw) for v in pair)
    return torch.nn.functional.pad(x, flat)

kernel_name = 'standalone__gqa_block_cached__near_ridge'

def setup_inputs():

    _w = (lambda a: (lambda t: t.to(torch.bfloat16) if t.is_floating_point() else t)(torch.as_tensor(a)))
    B, Sq, D = 16, 48, 512
    Hq, Hkv, Sk, Dh = 32, 8, 512, 128
    assert Hq % Hkv == 0, (Hq, Hkv)
    return {
        "x": _w((lambda *s: torch.randn(*s, dtype=torch.bfloat16) * 0.8)(B, Sq, D)),
        "k_cache": _w((lambda *s: torch.randn(*s, dtype=torch.bfloat16) * 0.8)(B, Hkv, Sk, Dh)),
        "v_cache": _w((lambda *s: torch.randn(*s, dtype=torch.bfloat16) * 0.05)(B, Hkv, Sk, Dh)),
        "wq": _w((lambda *s: torch.randn(*s, dtype=torch.bfloat16) * 0.8)(D, Hq * Dh) * (D ** -0.5)),
        "wo": _w((lambda *s: torch.randn(*s, dtype=torch.bfloat16) * 0.05)(Hq * Dh, D) * ((Hq * Dh) ** -0.5)),
    }

def reference(x, k_cache, v_cache, wq, wo):
    B, Sq, D = x.shape
    Hq, Dh = 32, 128
    Hkv = k_cache.shape[1]
    rep = Hq // Hkv
    q = (lambda x, *d: x.permute(*d))((x @ wq).reshape(B, Sq, Hq, Dh), 0, 2, 1, 3)
    k = (lambda x, n, axis: torch.repeat_interleave(x, n, dim=axis))(k_cache, rep, axis=1)
    v = (lambda x, n, axis: torch.repeat_interleave(x, n, dim=axis))(v_cache, rep, axis=1)
    scores = torch.einsum("bhqd,bhkd->bhqk", q, k) * (Dh ** -0.5)
    p = _softmax(scores, axis=-1)
    o = torch.einsum("bhqk,bhkd->bhqd", p, v)
    return (lambda x, *d: x.permute(*d))(o, 0, 2, 1, 3).reshape(B, Sq, Hq * Dh) @ wo
```

```python
class V:
    def __init__(self, i, n=1, neg=False, absv=False):
        self.i, self.n, self.neg, self.absv = i, n, neg, absv

    def __str__(self):
        s = f"v{self.i}" if self.n == 1 else f"v[{self.i}:{self.i + self.n - 1}]"
        if self.absv:
            s = f"abs({s})"
        if self.neg:
            s = "-" + s
        return s

    def regs(self):
        return set(range(self.i, self.i + self.n))

    def __neg__(self):
        return V(self.i, self.n, not self.neg, self.absv)

    def __getitem__(self, k):
        assert 0 <= k < self.n
        return V(self.i + k)

    def sub(self, k, n):
        assert 0 <= k and k + n <= self.n
        return V(self.i + k, n)


class S:
    def __init__(self, i, n=1):
        self.i, self.n = i, n

    def __str__(self):
        if isinstance(self.i, str):
            return self.i
        return f"s{self.i}" if self.n == 1 else f"s[{self.i}:{self.i + self.n - 1}]"

    def regs(self):
        if isinstance(self.i, str):
            return {self.i}
        return set(range(self.i, self.i + self.n))

    def __getitem__(self, k):
        assert 0 <= k < self.n
        return S(self.i + k)


VCC = S("vcc")
M0 = S("m0")
EXEC = S("exec")

TRANS = ("v_exp_f32", "v_log_f32", "v_rcp_f32", "v_rsq_f32", "v_sqrt_f32")


class Ins:
    __slots__ = ("text", "kind", "vr", "vw", "sr", "sw", "ab", "c", "d", "slots", "passes")

    def __init__(self, text, kind, vr=(), vw=(), sr=(), sw=(), ab=(), c=(), d=(), slots=1, passes=0):
        self.text, self.kind = text, kind
        self.vr, self.vw, self.sr, self.sw = set(vr), set(vw), set(sr), set(sw)
        self.ab, self.c, self.d = set(ab), set(c), set(d)
        self.slots = slots
        self.passes = passes


def fmt(x):
    if isinstance(x, (V, S)):
        return str(x)
    if isinstance(x, float):
        return repr(x)
    if isinstance(x, int):
        return str(x) if -16 <= x <= 64 else hex(x & 0xFFFFFFFF)
    return str(x)


class Asm:
    def __init__(self):
        self.ins = []
        self.nvm = 0
        self.nds = 0
        self.vm_done = 0
        self.ds_done = 0

    def raw(self, text, kind="other", **kw):
        self.ins.append(Ins(text, kind, **kw))

    def comment(self, text):
        self.ins.append(Ins("; " + text, "comment", slots=0))

    def label(self, name):
        self.ins.append(Ins(name + ":", "label", slots=0))

    def _rw(self, ops):
        vr, sr = set(), set()
        for o in ops:
            if isinstance(o, V):
                vr |= o.regs()
            elif isinstance(o, S):
                sr |= o.regs()
        return vr, sr

    def valu(self, op, dst, *srcs, extra=""):
        vr, sr = self._rw(srcs)
        vw, sw = self._rw([dst])
        kind = "trans" if op in TRANS else "valu"
        if op in ("v_fmac_f32",):
            vr |= vw
        if op.startswith("v_readfirstlane") or op.startswith("v_readlane"):
            kind = "rdlane"
        if op.startswith("v_permlane"):
            kind = "permlane"
            vr |= vw
            vw |= vr
        text = f"{op} {fmt(dst)}, " + ", ".join(fmt(s) for s in srcs) + (" " + extra if extra else "")
        self.ins.append(Ins(text, kind, vr=vr, vw=vw, sr=sr, sw=sw))

    def salu(self, op, dst, *srcs):
        _, sr = self._rw(srcs)
        _, sw = self._rw([dst])
        text = f"{op} {fmt(dst)}, " + ", ".join(fmt(s) for s in srcs)
        self.ins.append(Ins(text, "salu", sr=sr, sw=sw))

    def scmp(self, op, a, b):
        _, sr = self._rw([a, b])
        self.ins.append(Ins(f"{op} {fmt(a)}, {fmt(b)}", "salu", sr=sr))

    def branch(self, op, label):
        self.ins.append(Ins(f"{op} {label}", "branch"))

    def mfma(self, d, a, b, c, shape="16x16x32"):
        passes = 4 if shape == "16x16x32" else 8
        cr = c.regs() if isinstance(c, V) else set()
        text = f"v_mfma_f32_{shape}_bf16 {fmt(d)}, {fmt(a)}, {fmt(b)}, {fmt(c)}"
        self.ins.append(
            Ins(text, "mfma", vr=a.regs() | b.regs() | cr, vw=d.regs(), ab=a.regs() | b.regs(), c=cr, d=d.regs(), passes=passes)
        )

    def _w(self, n):
        return {1: "dword", 2: "dwordx2", 3: "dwordx3", 4: "dwordx4"}[n]

    def bload(self, dst, voff, srd, soff=0, off=0, flags=""):
        text = f"buffer_load_{self._w(dst.n)} {fmt(dst)}, {fmt(voff)}, {fmt(srd)}, {fmt(soff)} offen"
        if off:
            assert 0 <= off < 4096
            text += f" offset:{off}"
        if flags:
            text += " " + flags
        _, sr = self._rw([srd, soff])
        self.ins.append(Ins(text, "vmem_ld", vr=voff.regs(), vw=dst.regs(), sr=sr))
        self.nvm += 1
        return self.nvm - 1

    def bload_lds(self, voff, srd, soff=0, off=0, flags=""):
        text = f"buffer_load_dwordx4 {fmt(voff)}, {fmt(srd)}, {fmt(soff)} offen"
        if off:
            assert 0 <= off < 4096
            text += f" offset:{off}"
        if flags:
            text += " " + flags
        text += " lds"
        _, sr = self._rw([srd, soff])
        self.ins.append(Ins(text, "dma", vr=voff.regs(), sr=sr | {"m0"}))
        self.nvm += 1
        return self.nvm - 1

    def bstore(self, src, voff, srd, soff=0, off=0, flags=""):
        text = f"buffer_store_{self._w(src.n)} {fmt(src)}, {fmt(voff)}, {fmt(srd)}, {fmt(soff)} offen"
        if off:
            assert 0 <= off < 4096
            text += f" offset:{off}"
        if flags:
            text += " " + flags
        _, sr = self._rw([srd, soff])
        self.ins.append(Ins(text, "vmem_st", vr=voff.regs() | src.regs(), sr=sr, d=src.regs() if src.n >= 3 else ()))
        self.nvm += 1
        return self.nvm - 1

    def batomic(self, op, data, voff, srd, soff=0, off=0, flags=""):
        text = f"buffer_atomic_{op} {fmt(data)}, {fmt(voff)}, {fmt(srd)}, {fmt(soff)} offen"
        if off:
            text += f" offset:{off}"
        if flags:
            text += " " + flags
        _, sr = self._rw([srd, soff])
        ret = "sc0" in flags.split()
        self.ins.append(Ins(text, "vmem_ld" if ret else "vmem_st", vr=voff.regs() | data.regs(), vw=data.regs() if ret else (), sr=sr))
        self.nvm += 1
        return self.nvm - 1

    def dsread(self, dst, addr, off=0, tr=False):
        if tr:
            op = "ds_read_b64_tr_b16"
            assert dst.n == 2
        else:
            op = {1: "ds_read_b32", 2: "ds_read_b64", 4: "ds_read_b128"}[dst.n]
        assert 0 <= off < 65536
        text = f"{op} {fmt(dst)}, {fmt(addr)}" + (f" offset:{off}" if off else "")
        self.ins.append(Ins(text, "ds_rd", vr=addr.regs(), vw=dst.regs()))
        self.nds += 1
        return self.nds - 1

    def dswrite(self, addr, src, off=0):
        op = {1: "ds_write_b32", 2: "ds_write_b64", 4: "ds_write_b128"}[src.n]
        assert 0 <= off < 65536
        text = f"{op} {fmt(addr)}, {fmt(src)}" + (f" offset:{off}" if off else "")
        self.ins.append(Ins(text, "ds_wr", vr=addr.regs() | src.regs()))
        self.nds += 1
        return self.nds - 1

    def wait(self, vm=None, ds=None):
        parts = []
        if vm is not None and vm >= self.vm_done:
            n = self.nvm - 1 - vm
            self.vm_done = vm + 1
            if n <= 63:
                parts.append(f"vmcnt({n})")
        if ds is not None and ds >= self.ds_done:
            n = self.nds - 1 - ds
            self.ds_done = ds + 1
            parts.append(f"lgkmcnt({min(n, 15)})")
        if parts:
            self.ins.append(Ins("s_waitcnt " + " ".join(parts), "wait"))

    def wait_all(self, vm=True, ds=True):
        parts = []
        if vm:
            parts.append("vmcnt(0)")
            self.vm_done = self.nvm
        if ds:
            parts.append("lgkmcnt(0)")
            self.ds_done = self.nds
        self.ins.append(Ins("s_waitcnt " + " ".join(parts), "wait"))

    def barrier(self):
        self.ins.append(Ins("s_barrier", "barrier"))

    def nop(self, n):
        while n > 0:
            k = min(n, 16)
            self.ins.append(Ins(f"s_nop {k - 1}", "nop", slots=k))
            n -= k

    def _need(self, p, c):
        need = 0
        valu_kinds = ("valu", "trans", "rdlane", "permlane")
        if p.kind in valu_kinds:
            if c.kind == "mfma" and (p.vw & c.vr):
                need = max(need, 2)
            if c.kind == "rdlane" and (p.vw & c.vr):
                need = max(need, 1)
            if c.kind == "permlane" and (p.vw & c.vr):
                need = max(need, 2)
            if p.kind == "trans" and c.kind in ("valu", "rdlane", "permlane") and (p.vw & (c.vr | c.vw)):
                need = max(need, 1)
            if p.sw:
                if c.kind in valu_kinds and (p.sw & c.sr):
                    need = max(need, 4 if c.kind == "rdlane" else 2)
                if c.kind in ("vmem_ld", "vmem_st", "dma") and (p.sw & c.sr):
                    need = max(need, 5)
                if c.kind in ("salu", "branch") and (p.sw & c.sr):
                    need = max(need, 2)
        if p.kind == "mfma":
            hi = {4: 8, 8: 12}[p.passes]
            ov = {4: 6, 8: 10}[p.passes]
            war = {4: 3, 8: 7}[p.passes]
            if c.kind == "mfma":
                if p.d & c.ab:
                    need = max(need, hi)
                if p.d & c.c:
                    if not (p.d == c.c and p.passes == c.passes):
                        need = max(need, ov)
                if (p.d & c.d) and not (p.d == c.c):
                    need = max(need, ov)
            elif c.kind in valu_kinds:
                if p.d & (c.vr | c.vw):
                    need = max(need, hi)
                if p.c & c.vw:
                    need = max(need, war)
            elif c.kind in ("vmem_ld", "vmem_st", "dma", "ds_rd", "ds_wr"):
                if p.d & (c.vr | c.vw):
                    need = max(need, hi)
                if p.c & c.vw:
                    need = max(need, war)
        if p.kind == "salu" and "m0" in p.sw and c.kind == "dma":
            need = max(need, 1)
        if p.kind == "vmem_st" and p.d:
            if c.kind in valu_kinds + ("mfma",) and (p.d & c.vw):
                need = max(need, 2)
            elif p.d & c.vw:
                need = max(need, 1)
        return need

    def finalize(self):
        out = []
        for ins in self.ins:
            if ins.kind in ("comment",):
                out.append(ins)
                continue
            if ins.kind in ("label", "branch"):
                pass
            dist = 0
            need_pad = 0
            for p in reversed(out):
                if p.kind == "comment":
                    continue
                if p.kind == "label":
                    continue
                n = self._need(p, ins)
                if n > dist:
                    need_pad = max(need_pad, n - dist)
                dist += p.slots
                if dist >= 20:
                    break
            while need_pad > 0:
                k = min(need_pad, 16)
                out.append(Ins(f"s_nop {k - 1}", "nop", slots=k))
                need_pad -= k
            out.append(ins)
        return out

    def text(self):
        lines = []
        for i in self.finalize():
            if i.kind == "label":
                lines.append(i.text)
            else:
                lines.append("    " + i.text)
        return "\n".join(lines) + "\n"
```

```python
import math
from dsl import Asm, V, S, M0

XB = 81920
QB = 131072
ST = 155648
LDS_BYTES = 163840
RING = 6


def G(k, n=4):
    return V(4 * k, n)


def interleave(a_list, b_list):
    out = []
    na, nb = len(a_list), len(b_list)
    ib = 0
    for ia, t in enumerate(a_list):
        out.append(t)
        want = (ia + 1) * nb // max(na, 1)
        while ib < want:
            out.append(b_list[ib])
            ib += 1
    out.extend(b_list[ib:])
    return out


def gen_k1(name, dbg=None):
    a = Asm()
    tid, lane, vn, vg = V(0), V(1), V(2), V(3)
    xa = [V(4 + i) for i in range(4)]
    v_wq, v_k = V(8), V(9)
    v_vd = [V(10), V(11)]
    t0, t1 = V(12), V(13)
    v_qw, v_sw = V(14), V(15)
    v_tr = [V(16 + i) for i in range(8)]
    v_sr = V(24)
    v_ow = [V(25 + i) for i in range(3)]
    v_or = V(28)
    v_os = V(29)
    vmax = [V(30 + i) for i in range(3)]
    vmc = [V(33 + i) for i in range(3)]
    vls = [V(36 + i) for i in range(3)]
    t2 = V(39)
    tq = [V(40, 4), V(44, 4)]

    ring = [V(48 + 8 * t, 8) for t in range(RING)]
    Abuf = [[G(24 + 2 * b), G(25 + 2 * b)] for b in range(2)]
    Bbuf = [[G(28 + 3 * b + qt) for qt in range(3)] for b in range(2)]
    accQ = [[G(34 + 3 * c + qt) for qt in range(3)] for c in range(2)]
    Kt = [[G(40 + 4 * t + p) for p in range(4)] for t in range(6)]
    Kt.append([G(20 + p) for p in range(4)])
    Kt.append([G(12 + p) for p in range(4)])
    qf_groups = [16, 17, 18, 19, 24, 25, 26, 27, 28, 29, 30, 31]
    Qf = [[G(qf_groups[4 * qt + p]) for p in range(4)] for qt in range(3)]
    St = [[G(32 + 3 * kt + qt) for qt in range(3)] for kt in range(8)]
    o_groups = qf_groups + [56, 57, 58, 59] + [20, 21, 22, 23] + [12, 13, 14, 15]
    Oacc = [[G(o_groups[3 * u + qt]) for qt in range(3)] for u in range(8)]
    Vf = [G(60 + i) for i in range(4)]

    srd_x, srd_k, srd_v, srd_wq, srd_o = S(20, 4), S(24, 4), S(28, 4), S(32, 4), S(36, 4)
    s_w, s_kvh, s_b, s_hh, s_h, s_kq = S(40), S(41), S(42), S(43), S(44), S(45)
    s_lo, s_hi, s_c = S(46), S(47), S(48)
    s_wq, s_k, s_t0, s_t1, s_vd, s_t2 = S(49), S(50), S(51), S(52), S(53), S(54)

    a.scmp("s_cmp_ge_u32", S(2), 256)
    a.branch("s_cbranch_scc1", f"{name}_end")
    a.raw("s_load_dwordx16 s[4:19], s[0:1], 0", "smem")
    a.valu("v_and_b32", lane, 63, tid)
    a.valu("v_lshrrev_b32", t0, 6, tid)
    a.valu("v_readfirstlane_b32", s_w, t0)
    a.valu("v_and_b32", vn, 15, lane)
    a.valu("v_lshrrev_b32", vg, 4, lane)
    a.salu("s_and_b32", s_kvh, S(2), 7)
    a.salu("s_lshr_b32", s_t0, S(2), 3)
    a.salu("s_and_b32", s_hh, s_t0, 1)
    a.salu("s_lshr_b32", s_b, s_t0, 1)
    a.salu("s_lshr_b32", s_h, s_w, 2)
    a.salu("s_and_b32", s_kq, s_w, 3)
    a.salu("s_mov_b32", s_lo, 0x05040100)
    a.salu("s_mov_b32", s_hi, 0x07060302)
    cval = (128 ** -0.5) * math.log2(math.e)
    import struct
    a.salu("s_mov_b32", s_c, struct.unpack("<I", struct.pack("<f", cval))[0])
    a.raw("s_waitcnt lgkmcnt(0)", "wait")

    def mk_srd(srd, ptr, off_s, size):
        if off_s is None:
            a.salu("s_mov_b32", srd[0], S(ptr))
            a.salu("s_and_b32", srd[1], S(ptr + 1), 0xFFFF)
        else:
            a.salu("s_add_u32", srd[0], S(ptr), off_s)
            a.salu("s_addc_u32", srd[1], S(ptr + 1), 0)
            a.salu("s_and_b32", srd[1], srd[1], 0xFFFF)
        a.salu("s_mov_b32", srd[2], size)
        a.salu("s_mov_b32", srd[3], 0x00020000)

    a.salu("s_mul_i32", s_t0, s_b, 49152)
    mk_srd(srd_x, 4, s_t0, 49152)
    a.salu("s_lshl_b32", s_t0, s_b, 3)
    a.salu("s_add_u32", s_t0, s_t0, s_kvh)
    a.salu("s_lshl_b32", s_t0, s_t0, 17)
    mk_srd(srd_k, 6, s_t0, 131072)
    mk_srd(srd_v, 8, s_t0, 131072)
    mk_srd(srd_wq, 10, None, 4194304)
    mk_srd(srd_o, 18, None, 768 * 4096 * 2)

    a.salu("s_mul_i32", s_t0, s_w, 6)
    xtok = None
    for r in range(6):
        a.salu("s_add_u32", s_t1, s_t0, r)
        a.salu("s_and_b32", s_t2, s_t1, 15)
        a.valu("v_xor_b32", t0, s_t2, lane)
        a.valu("v_lshlrev_b32", t0, 4, t0)
        a.salu("s_lshl_b32", s_t1, s_t1, 10)
        a.salu("s_add_u32", M0, s_t1, XB)
        xtok = a.bload_lds(t0, srd_x, s_t1)

    a.valu("v_lshlrev_b32", v_wq, 16, vg)
    a.valu("v_lshl_add_u32", v_wq, vn, 2, v_wq)
    a.salu("s_lshl_b32", s_wq, s_kvh, 10)
    a.salu("s_lshl_b32", s_t0, s_hh, 9)
    a.salu("s_add_u32", s_wq, s_wq, s_t0)
    a.salu("s_lshl_b32", s_t0, s_w, 6)
    a.salu("s_add_u32", s_wq, s_wq, s_t0)
    wq_tok = {}

    def issue_wq(ks):
        slot = ring[ks % RING]
        for j in range(8):
            wq_tok[ks] = a.bload(slot[j], v_wq, srd_wq, s_wq)
            a.salu("s_add_u32", s_wq, s_wq, 8192 if j < 7 else 25 * 8192)

    for ks in range(RING):
        issue_wq(ks)

    for u in range(4):
        a.valu("v_add_u32", t0, 4 * u, vg)
        a.valu("v_xor_b32", t0, t0, vn)
        a.valu("v_lshlrev_b32", t0, 4, t0)
        a.valu("v_lshl_add_u32", xa[u], vn, 10, t0)
        a.valu("v_add_u32", xa[u], XB, xa[u])
    a.valu("v_lshlrev_b32", t0, 4, vg)
    a.valu("v_lshl_add_u32", v_k, vn, 8, t0)
    a.salu("s_lshl_b32", s_k, s_kq, 15)
    for e in range(2):
        a.valu("v_add_u32", t0, 4 * e, vg)
        a.valu("v_lshlrev_b32", t0, 1, t0)
        a.valu("v_xor_b32", t0, t0, vn)
        a.valu("v_lshlrev_b32", t0, 4, t0)
        a.valu("v_lshl_add_u32", v_vd[e], vg, 8, t0)
    a.salu("s_lshl_b32", s_t0, s_kq, 2)
    a.valu("v_add_u32", t0, s_t0, vg)
    a.valu("v_xor_b32", t0, t0, vn)
    a.valu("v_lshlrev_b32", t0, 4, t0)
    a.valu("v_lshl_add_u32", v_qw, vn, 8, t0)
    a.salu("s_mul_i32", s_t0, s_h, 48 * 256)
    a.salu("s_add_u32", s_t0, s_t0, QB)
    a.valu("v_add_u32", v_qw, s_t0, v_qw)
    a.salu("s_mul_i32", s_t0, s_h, 3072)
    a.salu("s_add_u32", s_t0, s_t0, ST)
    a.valu("v_lshl_add_u32", v_sr, vn, 6, s_t0)
    a.salu("s_lshl_b32", s_t1, s_kq, 4)
    a.valu("v_lshl_add_u32", t0, vg, 2, s_t1)
    a.valu("v_add_u32", v_sw, t0, v_sr)
    a.valu("v_lshrrev_b32", t0, 2, vn)
    a.valu("v_lshl_add_u32", t1, vg, 2, t0)
    a.valu("v_and_b32", t2, 7, t1)
    a.valu("v_lshlrev_b32", t1, 8, t1)
    a.valu("v_lshl_add_u32", t1, t2, 5, t1)
    a.valu("v_and_b32", t0, 3, vn)
    a.valu("v_lshl_add_u32", t1, t0, 3, t1)
    a.valu("v_add_u32", t1, s_k, t1)
    for u in range(8):
        a.salu("s_lshl_b32", s_t0, s_kq, 1)
        a.salu("s_add_u32", s_t0, s_t0, u)
        a.salu("s_and_b32", s_t0, s_t0, 7)
        a.salu("s_lshl_b32", s_t0, s_t0, 5)
        a.valu("v_xor_b32", v_tr[u], s_t0, t1)
    for d in range(1, 4):
        a.salu("s_add_u32", s_t0, s_kq, d)
        a.salu("s_and_b32", s_t0, s_t0, 3)
        a.salu("s_lshl_b32", s_t1, s_h, 2)
        a.salu("s_add_u32", s_t0, s_t0, s_t1)
        a.salu("s_mul_i32", s_t0, s_t0, 3 * 6144)
        a.salu("s_add_u32", s_t0, s_t0, (d - 1) * 6144)
        a.valu("v_lshl_add_u32", v_ow[d - 1], lane, 4, s_t0)
    a.salu("s_mul_i32", s_t0, s_w, 3 * 6144)
    a.valu("v_lshl_add_u32", v_or, lane, 4, s_t0)
    a.salu("s_mul_i32", s_t0, s_b, 48 * 8192)
    a.salu("s_lshl_b32", s_t1, s_kvh, 10)
    a.salu("s_add_u32", s_t0, s_t0, s_t1)
    a.salu("s_lshl_b32", s_t1, s_hh, 9)
    a.salu("s_add_u32", s_t0, s_t0, s_t1)
    a.salu("s_lshl_b32", s_t1, s_h, 8)
    a.salu("s_add_u32", s_t0, s_t0, s_t1)
    a.salu("s_lshl_b32", s_t1, s_kq, 6)
    a.salu("s_add_u32", s_t0, s_t0, s_t1)
    a.valu("v_lshlrev_b32", t0, 3, vg)
    a.valu("v_lshl_add_u32", v_os, vn, 13, t0)
    a.valu("v_add_u32", v_os, s_t0, v_os)
    a.salu("s_mul_i32", s_vd, s_w, 10240)

    k_tok = {}

    def issue_k(t):
        for p in range(4):
            k_tok[(t, p)] = a.bload(Kt[t][p], v_k, srd_k, s_k, off=64 * p)
        a.salu("s_add_u32", s_k, s_k, 4096)

    vd_count = [0]

    def issue_vdma(n):
        for _ in range(n):
            a.salu("s_mov_b32", M0, s_vd)
            a.bload_lds(v_vd[vd_count[0] & 1], srd_v, s_vd)
            a.salu("s_add_u32", s_vd, s_vd, 1024)
            vd_count[0] += 1

    a.wait(vm=xtok)
    a.barrier()
    x_tok = {}

    def read_x(ks):
        for qt in range(3):
            x_tok[ks] = a.dsread(Bbuf[ks & 1][qt], xa[ks & 3], off=qt * 16384 + (ks >> 2) * 256)

    read_x(0)
    for ks in range(16):
        a.wait(vm=wq_tok[ks])
        slot = ring[ks % RING]
        A = Abuf[ks & 1]
        for q in range(4):
            a.valu("v_perm_b32", A[0][q], slot[2 * q + 1], slot[2 * q], s_lo)
            a.valu("v_perm_b32", A[1][q], slot[2 * q + 1], slot[2 * q], s_hi)
        if ks + RING <= 15:
            issue_wq(ks + RING)
        elif ks == 10:
            issue_k(0); issue_k(1)
        elif ks == 11:
            issue_k(2); issue_k(3)
        elif ks == 12:
            issue_k(4); issue_k(5); issue_k(6)
        elif ks == 13:
            issue_k(7); issue_vdma(4)
        elif ks == 14:
            issue_vdma(6)
        if ks < 15:
            read_x(ks + 1)
        a.wait(ds=x_tok[ks])
        for c in range(2):
            for qt in range(3):
                a.mfma(accQ[c][qt], A[c], Bbuf[ks & 1][qt], 0 if ks == 0 else accQ[c][qt])
    qtmp = [tq[0], tq[1], G(32)]
    for qt in range(3):
        for r in range(4):
            a.valu("v_cvt_pk_bf16_f32", qtmp[qt][r], accQ[0][qt][r], accQ[1][qt][r])
        a.dswrite(v_qw, qtmp[qt], off=qt * 4096)
    a.wait_all(vm=False)
    a.barrier()
    a.salu("s_mul_i32", s_vd, s_w, 6144)
    a.salu("s_add_u32", s_vd, s_vd, 81920)
    issue_vdma(6)
    a.salu("s_mul_i32", s_t0, s_h, 48 * 256)
    a.salu("s_add_u32", s_t0, s_t0, QB)
    for p in range(4):
        a.valu("v_add_u32", t0, 4 * p, vg)
        a.valu("v_xor_b32", t0, t0, vn)
        a.valu("v_lshlrev_b32", t0, 4, t0)
        a.valu("v_lshl_add_u32", xa[p], vn, 8, t0)
        a.valu("v_add_u32", xa[p], s_t0, xa[p])
    qtok = None
    for qt in range(3):
        for p in range(4):
            qtok = a.dsread(Qf[qt][p], xa[p], off=qt * 4096)
    a.wait(ds=qtok)

    def do_max(kt):
        for qt in range(3):
            s = St[kt][qt]
            if kt == 0:
                a.valu("v_max3_f32", vmax[qt], s[0], s[1], s[2])
                a.valu("v_max_f32", vmax[qt], vmax[qt], s[3])
            else:
                a.valu("v_max3_f32", vmax[qt], vmax[qt], s[0], s[1])
                a.valu("v_max3_f32", vmax[qt], vmax[qt], s[2], s[3])

    for kt in range(8):
        for p in range(4):
            a.wait(vm=k_tok[(kt, p)])
            for qt in range(3):
                a.mfma(St[kt][qt], Kt[kt][p], Qf[qt][p], 0 if p == 0 else St[kt][qt])
            if p == 2 and kt > 0:
                do_max(kt - 1)
    do_max(7)
    for qt in range(3):
        a.dswrite(v_sw, vmax[qt], off=qt * 1024)
    a.wait_all()
    a.barrier()
    for qt in range(3):
        tok = None
        for i in range(4):
            tok = a.dsread(Vf[i], v_sr, off=qt * 1024 + 16 * i)
        a.wait(ds=tok)
        f = [Vf[i][j] for i in range(4) for j in range(4)]
        a.valu("v_max3_f32", vmc[qt], f[0], f[1], f[2])
        for i in range(3, 15, 2):
            a.valu("v_max3_f32", vmc[qt], vmc[qt], f[i], f[i + 1])
        a.valu("v_max_f32", vmc[qt], vmc[qt], f[15])
        a.valu("v_mul_f32", vmc[qt], s_c, vmc[qt])

    def exp_thunks(s):
        th = []
        for qt in range(3):
            for t in (2 * s, 2 * s + 1):
                for r in range(4):
                    x = St[t][qt][r]
                    th.append(lambda x=x, qt=qt: a.valu("v_fma_f32", x, x, s_c, -vmc[qt]))
                    th.append(lambda x=x: a.valu("v_exp_f32", x, x))
            for t in (2 * s, 2 * s + 1):
                for r in range(4):
                    x = St[t][qt][r]
                    if s == 0 and t == 0 and r == 0:
                        th.append(lambda x=x, qt=qt: a.valu("v_mov_b32", vls[qt], x))
                    else:
                        th.append(lambda x=x, qt=qt: a.valu("v_add_f32", vls[qt], vls[qt], x))
            d = St[2 * s][qt]
            e = St[2 * s + 1][qt]
            th.append(lambda d=d: a.valu("v_cvt_pk_bf16_f32", d[0], d[0], d[1]))
            th.append(lambda d=d: a.valu("v_cvt_pk_bf16_f32", d[1], d[2], d[3]))
            th.append(lambda d=d, e=e: a.valu("v_cvt_pk_bf16_f32", d[2], e[0], e[1]))
            th.append(lambda d=d, e=e: a.valu("v_cvt_pk_bf16_f32", d[3], e[2], e[3]))
        return th

    vtok = {}

    def rd_v(s, u):
        f = Vf[(8 * s + u) % 4]
        a.dsread(f.sub(0, 2), v_tr[u], off=(2 * s) * 4096, tr=True)
        vtok[(s, u)] = a.dsread(f.sub(2, 2), v_tr[u], off=(2 * s + 1) * 4096, tr=True)

    def pv_thunks(s):
        th = []
        for u in range(8):
            def f(u=u):
                a.wait(ds=vtok[(s, u)])
                fr = Vf[(8 * s + u) % 4]
                for qt in range(3):
                    a.mfma(Oacc[u][qt], fr, St[2 * s][qt], 0 if s == 0 else Oacc[u][qt])
                nx = 8 * s + u + 3
                if nx < 32:
                    rd_v(nx // 8, nx % 8)
            th.append(f)
        return th

    for th in exp_thunks(0):
        th()
    for i in range(3):
        rd_v(0, i)
    for s in range(4):
        pv = pv_thunks(s)
        ex = exp_thunks(s + 1) if s < 3 else []
        for th in interleave(pv, ex):
            th()
    a.barrier()
    for qt in range(3):
        a.dswrite(v_sw, vls[qt], off=qt * 1024)
    for d in range(1, 4):
        for dtl in range(2):
            for qt in range(3):
                a.dswrite(v_ow[d - 1], Oacc[2 * d + dtl][qt], off=(dtl * 3 + qt) * 1024)
    a.wait_all(vm=False)
    a.barrier()
    R = [G(32 + i) for i in range(18)]
    rtok = []
    for i in range(18):
        rtok.append(a.dsread(R[i], v_or, off=i * 1024))
    for qt in range(3):
        tok = None
        for i in range(4):
            tok = a.dsread(Vf[i], v_sr, off=qt * 1024 + 16 * i)
        a.wait(ds=tok)
        f = [Vf[i][j] for i in range(4) for j in range(4)]
        a.valu("v_add_f32", vls[qt], f[0], f[1])
        for i in range(2, 16):
            a.valu("v_add_f32", vls[qt], vls[qt], f[i])
        a.valu("v_rcp_f32", vls[qt], vls[qt])
    a.wait(ds=rtok[-1])
    for d in range(3):
        for dtl in range(2):
            for qt in range(3):
                src = R[d * 6 + dtl * 3 + qt]
                for r in range(4):
                    a.valu("v_add_f32", Oacc[dtl][qt][r], Oacc[dtl][qt][r], src[r])
    a.salu("s_mov_b32", s_t0, 0)
    for qt in range(3):
        for u in range(2):
            o = Oacc[u][qt]
            for r in range(4):
                a.valu("v_mul_f32", o[r], o[r], vls[qt])
            a.valu("v_cvt_pk_bf16_f32", o[0], o[0], o[1])
            a.valu("v_cvt_pk_bf16_f32", o[1], o[2], o[3])
            a.bstore(o.sub(0, 2), v_os, srd_o, s_t0, off=u * 32)
        if qt < 2:
            a.salu("s_add_u32", s_t0, s_t0, 16 * 8192)
    a.label(f"{name}_end")
    a.raw("s_endpgm", "other")
    return a
```

```python
from dsl import Asm, V, S, M0

LDS_BYTES = 49152
RING = 5


def G(k, n=4):
    return V(4 * k, n)


def gen_k2(name):
    a = Asm()
    tid, lane, vn, vg = V(0), V(1), V(2), V(3)
    v_wo = V(4)
    v_o = [V(5), V(6), V(7)]
    t0, t1 = V(8), V(9)
    v_pw, v_pr, v_out = V(10), V(11), V(12)
    wring = [V(16 + 8 * t, 8) for t in range(RING)]
    oring = [[G(14 + 3 * t + qt) for qt in range(3)] for t in range(RING)]
    Abuf = [[G(29 + 2 * b), G(30 + 2 * b)] for b in range(2)]
    acc = [[G(33 + 3 * c + qt) for qt in range(3)] for c in range(2)]

    srd_o, srd_wo, srd_out = S(20, 4), S(24, 4), S(28, 4)
    s_w, s_b, s_ct, s_lo, s_hi, s_wo, s_t0, s_t1 = (S(32 + i) for i in range(8))

    a.scmp("s_cmp_ge_u32", S(2), 256)
    a.branch("s_cbranch_scc1", f"{name}_end")
    a.raw("s_load_dwordx16 s[4:19], s[0:1], 0", "smem")
    a.valu("v_and_b32", lane, 63, tid)
    a.valu("v_lshrrev_b32", t0, 6, tid)
    a.valu("v_readfirstlane_b32", s_w, t0)
    a.valu("v_and_b32", vn, 15, lane)
    a.valu("v_lshrrev_b32", vg, 4, lane)
    a.salu("s_and_b32", s_b, S(2), 7)
    a.salu("s_lshl_b32", s_b, s_b, 1)
    a.salu("s_lshr_b32", s_t0, S(2), 3)
    a.salu("s_and_b32", s_t0, s_t0, 1)
    a.salu("s_add_u32", s_b, s_b, s_t0)
    a.salu("s_lshr_b32", s_ct, S(2), 4)
    a.salu("s_mov_b32", s_lo, 0x05040100)
    a.salu("s_mov_b32", s_hi, 0x07060302)
    a.raw("s_waitcnt lgkmcnt(0)", "wait")

    def mk_srd(srd, ptr, size):
        a.salu("s_mov_b32", srd[0], S(ptr))
        a.salu("s_and_b32", srd[1], S(ptr + 1), 0xFFFF)
        a.salu("s_mov_b32", srd[2], size)
        a.salu("s_mov_b32", srd[3], 0x00020000)

    mk_srd(srd_o, 18, 768 * 4096 * 2)
    mk_srd(srd_wo, 12, 4096 * 512 * 2)
    mk_srd(srd_out, 14, 768 * 512 * 2)

    a.valu("v_lshlrev_b32", v_wo, 13, vg)
    a.valu("v_lshl_add_u32", v_wo, vn, 2, v_wo)
    a.salu("s_lshl_b32", s_wo, s_w, 19)
    a.salu("s_lshl_b32", s_t0, s_ct, 6)
    a.salu("s_add_u32", s_wo, s_wo, s_t0)
    a.salu("s_mul_i32", s_t0, s_b, 48 * 8192)
    a.salu("s_lshl_b32", s_t1, s_w, 10)
    a.salu("s_add_u32", s_t0, s_t0, s_t1)
    a.valu("v_lshlrev_b32", t0, 4, vg)
    a.valu("v_lshl_add_u32", v_o[0], vn, 13, t0)
    a.valu("v_add_u32", v_o[0], s_t0, v_o[0])
    a.valu("v_add_u32", v_o[1], 16 * 8192, v_o[0])
    a.valu("v_add_u32", v_o[2], 32 * 8192, v_o[0])

    tok = {}

    def issue(ks):
        slot = ks % RING
        for qt in range(3):
            a.bload(oring[slot][qt], v_o[qt], srd_o, 0, off=64 * ks)
        for j in range(8):
            tok[ks] = a.bload(wring[slot][j], v_wo, srd_wo, s_wo)
            a.salu("s_add_u32", s_wo, s_wo, 1024 if j < 7 else 25 * 1024)

    for ks in range(RING):
        issue(ks)
    a.salu("s_mul_i32", s_t0, s_w, 6144)
    a.valu("v_lshl_add_u32", v_pw, lane, 4, s_t0)
    a.salu("s_lshl_b32", s_t0, s_w, 10)
    a.valu("v_lshl_add_u32", v_pr, lane, 4, s_t0)
    a.salu("s_mul_i32", s_t0, s_b, 48 * 1024)
    a.salu("s_lshl_b32", s_t1, s_w, 14)
    a.salu("s_add_u32", s_t0, s_t0, s_t1)
    a.salu("s_lshl_b32", s_t1, s_ct, 6)
    a.salu("s_add_u32", s_t0, s_t0, s_t1)
    a.valu("v_lshlrev_b32", t0, 4, vg)
    a.valu("v_lshl_add_u32", v_out, vn, 10, t0)
    a.valu("v_add_u32", v_out, s_t0, v_out)

    for ks in range(16):
        a.wait(vm=tok[ks])
        slot = ks % RING
        A = Abuf[ks & 1]
        for q in range(4):
            a.valu("v_perm_b32", A[0][q], wring[slot][2 * q + 1], wring[slot][2 * q], s_lo)
            a.valu("v_perm_b32", A[1][q], wring[slot][2 * q + 1], wring[slot][2 * q], s_hi)
        for c in range(2):
            for qt in range(3):
                a.mfma(acc[c][qt], A[c], oring[slot][qt], 0 if ks == 0 else acc[c][qt])
        if ks + RING <= 15:
            issue(ks + RING)
    for c in range(2):
        for qt in range(3):
            a.dswrite(v_pw, acc[c][qt], off=(c * 3 + qt) * 1024)
    a.wait_all(vm=False)
    a.barrier()
    a.scmp("s_cmp_ge_u32", s_w, 3)
    a.branch("s_cbranch_scc1", f"{name}_end")
    R = [G(14 + i) for i in range(16)]
    tk = None
    for w in range(8):
        for c in range(2):
            tk = a.dsread(R[2 * w + c], v_pr, off=w * 6144 + c * 3072)
    a.wait(ds=tk)
    for w in range(1, 8):
        for c in range(2):
            for r in range(4):
                a.valu("v_add_f32", R[c][r], R[c][r], R[2 * w + c][r])
    o = G(33)
    for r in range(4):
        a.valu("v_cvt_pk_bf16_f32", o[r], R[0][r], R[1][r])
    a.bstore(o, v_out, srd_out, 0)
    a.label(f"{name}_end")
    a.raw("s_endpgm", "other")
    return a
```

```python
import sys, os
sys.path.insert(0, os.path.dirname(os.path.abspath(__file__)))
import k1, k2

HEADER = """; Kernarg layout for this problem (64 bytes, ptrs only, base s[0:1]):
"""

KD = """.amdhsa_kernel {name}
  .amdhsa_next_free_vgpr {vgpr}
  .amdhsa_next_free_sgpr 96
  .amdhsa_accum_offset {acc}
  .amdhsa_group_segment_fixed_size 0
  .amdhsa_kernarg_size 64
  .amdhsa_user_sgpr_count 2
  .amdhsa_user_sgpr_kernarg_segment_ptr 1
  .amdhsa_system_sgpr_workgroup_id_x 1
.end_amdhsa_kernel
"""


def build(kernels):
    s = HEADER
    for name, _, grid, block, lds, _ in kernels:
        s += f"; @launch kernel={name} grid=({grid},1,1) block=({block},1,1) lds={lds}\n"
    s += '.amdgcn_target "amdgcn-amd-amdhsa--gfx950"\n.text\n'
    for name, asm, *_ in kernels:
        s += f".globl {name}\n.p2align 8\n.type {name},@function\n{name}:\n"
        s += asm.text()
    s += '.section .rodata,"a"\n'
    for name, _, _, _, _, vgpr in kernels:
        s += ".p2align 6\n" + KD.format(name=name, vgpr=vgpr, acc=(vgpr + 3) // 4 * 4)
    return s


if __name__ == "__main__":
    out = sys.argv[1] if len(sys.argv) > 1 else "standalone__gqa_block_cached__near_ridge.s"
    ks = [
        ("gqa_attn_kernel", k1.gen_k1("gqa_attn"), 256, 512, k1.LDS_BYTES, 256),
        ("gqa_oproj_kernel", k2.gen_k2("gqa_oproj"), 256, 512, k2.LDS_BYTES, 156),
    ]
    open(out, "w").write(build(ks))
    print("wrote", out)
```

```python
import math
from dsl import Asm, V, S, M0

XB = 81920
QB = 131072
ST = 155648
LDS_BYTES = 163840
RING = 6


def G(k, n=4):
    return V(4 * k, n)


def interleave(a_list, b_list):
    out = []
    na, nb = len(a_list), len(b_list)
    ib = 0
    for ia, t in enumerate(a_list):
        out.append(t)
        want = (ia + 1) * nb // max(na, 1)
        while ib < want:
            out.append(b_list[ib])
            ib += 1
    out.extend(b_list[ib:])
    return out


def gen_k1(name, dbg=None):
    a = Asm()
    tid, lane, vn, vg = V(0), V(1), V(2), V(3)
    xa = [V(4 + i) for i in range(4)]
    v_wq, v_k = V(8), V(9)
    v_vd = [V(10), V(11)]
    t0, t1 = V(12), V(13)
    v_qw, v_sw = V(14), V(15)
    v_tr = [V(16 + i) for i in range(8)]
    v_sr = V(24)
    v_ow = [V(25 + i) for i in range(3)]
    v_or = V(28)
    v_os = V(29)
    vmax = [V(30 + i) for i in range(3)]
    vmc = [V(33 + i) for i in range(3)]
    vls = [V(36 + i) for i in range(3)]
    t2 = V(39)
    tq = [V(40, 4), V(44, 4)]

    ring = [V(48 + 8 * t, 8) for t in range(RING)]
    Abuf = [[G(24 + 2 * b), G(25 + 2 * b)] for b in range(2)]
    Bbuf = [[G(28 + 3 * b + qt) for qt in range(3)] for b in range(2)]
    accQ = [[G(34 + 3 * c + qt) for qt in range(3)] for c in range(2)]
    Kt = [[G(40 + 4 * t + p) for p in range(4)] for t in range(6)]
    Kt.append([G(20 + p) for p in range(4)])
    Kt.append([G(12 + p) for p in range(4)])
    qf_groups = [16, 17, 18, 19, 24, 25, 26, 27, 28, 29, 30, 31]
    Qf = [[G(qf_groups[4 * qt + p]) for p in range(4)] for qt in range(3)]
    St = [[G(32 + 3 * kt + qt) for qt in range(3)] for kt in range(8)]
    o_groups = qf_groups + [56, 57, 58, 59] + [20, 21, 22, 23] + [12, 13, 14, 15]
    Oacc = [[G(o_groups[3 * u + qt]) for qt in range(3)] for u in range(8)]
    Vf = [G(60 + i) for i in range(4)]

    srd_x, srd_k, srd_v, srd_wq, srd_o = S(20, 4), S(24, 4), S(28, 4), S(32, 4), S(36, 4)
    s_w, s_kvh, s_b, s_hh, s_h, s_kq = S(40), S(41), S(42), S(43), S(44), S(45)
    s_lo, s_hi, s_c = S(46), S(47), S(48)
    s_wq, s_k, s_t0, s_t1, s_vd, s_t2 = S(49), S(50), S(51), S(52), S(53), S(54)

    nst = [0]

    def stamp():
        if dbg:
            a.raw(f"s_memtime s[{60 + 2 * nst[0]}:{61 + 2 * nst[0]}]", "smem")
            a.wait_all(vm=False)
            nst[0] += 1

    a.scmp("s_cmp_ge_u32", S(2), 256)
    a.branch("s_cbranch_scc1", f"{name}_end")
    stamp()
    a.raw("s_load_dwordx16 s[4:19], s[0:1], 0", "smem")
    a.valu("v_and_b32", lane, 63, tid)
    a.valu("v_lshrrev_b32", t0, 6, tid)
    a.valu("v_readfirstlane_b32", s_w, t0)
    a.valu("v_and_b32", vn, 15, lane)
    a.valu("v_lshrrev_b32", vg, 4, lane)
    a.salu("s_and_b32", s_kvh, S(2), 7)
    a.salu("s_lshr_b32", s_t0, S(2), 3)
    a.salu("s_and_b32", s_hh, s_t0, 1)
    a.salu("s_lshr_b32", s_b, s_t0, 1)
    a.salu("s_lshr_b32", s_h, s_w, 2)
    a.salu("s_and_b32", s_kq, s_w, 3)
    a.salu("s_mov_b32", s_lo, 0x05040100)
    a.salu("s_mov_b32", s_hi, 0x07060302)
    cval = (128 ** -0.5) * math.log2(math.e)
    import struct
    a.salu("s_mov_b32", s_c, struct.unpack("<I", struct.pack("<f", cval))[0])
    a.raw("s_waitcnt lgkmcnt(0)", "wait")

    def mk_srd(srd, ptr, off_s, size):
        if off_s is None:
            a.salu("s_mov_b32", srd[0], S(ptr))
            a.salu("s_and_b32", srd[1], S(ptr + 1), 0xFFFF)
        else:
            a.salu("s_add_u32", srd[0], S(ptr), off_s)
            a.salu("s_addc_u32", srd[1], S(ptr + 1), 0)
            a.salu("s_and_b32", srd[1], srd[1], 0xFFFF)
        a.salu("s_mov_b32", srd[2], size)
        a.salu("s_mov_b32", srd[3], 0x00020000)

    a.salu("s_mul_i32", s_t0, s_b, 49152)
    mk_srd(srd_x, 4, s_t0, 49152)
    a.salu("s_lshl_b32", s_t0, s_b, 3)
    a.salu("s_add_u32", s_t0, s_t0, s_kvh)
    a.salu("s_lshl_b32", s_t0, s_t0, 17)
    mk_srd(srd_k, 6, s_t0, 131072)
    mk_srd(srd_v, 8, s_t0, 131072)
    mk_srd(srd_wq, 10, None, 4194304)
    mk_srd(srd_o, 18, None, 768 * 4096 * 2)

    a.salu("s_mul_i32", s_t0, s_w, 6)
    xtok = None
    for r in range(6):
        a.salu("s_add_u32", s_t1, s_t0, r)
        a.salu("s_and_b32", s_t2, s_t1, 15)
        a.valu("v_xor_b32", t0, s_t2, lane)
        a.valu("v_lshlrev_b32", t0, 4, t0)
        a.salu("s_lshl_b32", s_t1, s_t1, 10)
        a.salu("s_add_u32", M0, s_t1, XB)
        xtok = a.bload_lds(t0, srd_x, s_t1)

    a.valu("v_lshlrev_b32", v_wq, 16, vg)
    a.valu("v_lshl_add_u32", v_wq, vn, 2, v_wq)
    a.salu("s_lshl_b32", s_wq, s_kvh, 10)
    a.salu("s_lshl_b32", s_t0, s_hh, 9)
    a.salu("s_add_u32", s_wq, s_wq, s_t0)
    a.salu("s_lshl_b32", s_t0, s_w, 6)
    a.salu("s_add_u32", s_wq, s_wq, s_t0)
    wq_tok = {}

    def issue_wq(ks):
        slot = ring[ks % RING]
        for j in range(8):
            wq_tok[ks] = a.bload(slot[j], v_wq, srd_wq, s_wq)
            a.salu("s_add_u32", s_wq, s_wq, 8192 if j < 7 else 25 * 8192)

    for ks in range(RING):
        issue_wq(ks)

    for u in range(4):
        a.valu("v_add_u32", t0, 4 * u, vg)
        a.valu("v_xor_b32", t0, t0, vn)
        a.valu("v_lshlrev_b32", t0, 4, t0)
        a.valu("v_lshl_add_u32", xa[u], vn, 10, t0)
        a.valu("v_add_u32", xa[u], XB, xa[u])
    a.valu("v_lshlrev_b32", t0, 4, vg)
    a.valu("v_lshl_add_u32", v_k, vn, 8, t0)
    a.salu("s_lshl_b32", s_k, s_kq, 15)
    for e in range(2):
        a.valu("v_add_u32", t0, 4 * e, vg)
        a.valu("v_lshlrev_b32", t0, 1, t0)
        a.valu("v_xor_b32", t0, t0, vn)
        a.valu("v_lshlrev_b32", t0, 4, t0)
        a.valu("v_lshl_add_u32", v_vd[e], vg, 8, t0)
    a.salu("s_lshl_b32", s_t0, s_kq, 2)
    a.valu("v_add_u32", t0, s_t0, vg)
    a.valu("v_xor_b32", t0, t0, vn)
    a.valu("v_lshlrev_b32", t0, 4, t0)
    a.valu("v_lshl_add_u32", v_qw, vn, 8, t0)
    a.salu("s_mul_i32", s_t0, s_h, 48 * 256)
    a.salu("s_add_u32", s_t0, s_t0, QB)
    a.valu("v_add_u32", v_qw, s_t0, v_qw)
    a.salu("s_mul_i32", s_t0, s_h, 3072)
    a.salu("s_add_u32", s_t0, s_t0, ST)
    a.valu("v_lshl_add_u32", v_sr, vn, 6, s_t0)
    a.salu("s_lshl_b32", s_t1, s_kq, 4)
    a.valu("v_lshl_add_u32", t0, vg, 2, s_t1)
    a.valu("v_add_u32", v_sw, t0, v_sr)
    a.valu("v_lshrrev_b32", t0, 2, vn)
    a.valu("v_lshl_add_u32", t1, vg, 2, t0)
    a.valu("v_and_b32", t2, 7, t1)
    a.valu("v_lshlrev_b32", t1, 8, t1)
    a.valu("v_lshl_add_u32", t1, t2, 5, t1)
    a.valu("v_and_b32", t0, 3, vn)
    a.valu("v_lshl_add_u32", t1, t0, 3, t1)
    a.valu("v_add_u32", t1, s_k, t1)
    for u in range(8):
        a.salu("s_lshl_b32", s_t0, s_kq, 1)
        a.salu("s_add_u32", s_t0, s_t0, u)
        a.salu("s_and_b32", s_t0, s_t0, 7)
        a.salu("s_lshl_b32", s_t0, s_t0, 5)
        a.valu("v_xor_b32", v_tr[u], s_t0, t1)
    for d in range(1, 4):
        a.salu("s_add_u32", s_t0, s_kq, d)
        a.salu("s_and_b32", s_t0, s_t0, 3)
        a.salu("s_lshl_b32", s_t1, s_h, 2)
        a.salu("s_add_u32", s_t0, s_t0, s_t1)
        a.salu("s_mul_i32", s_t0, s_t0, 3 * 6144)
        a.salu("s_add_u32", s_t0, s_t0, (d - 1) * 6144)
        a.valu("v_lshl_add_u32", v_ow[d - 1], lane, 4, s_t0)
    a.salu("s_mul_i32", s_t0, s_w, 3 * 6144)
    a.valu("v_lshl_add_u32", v_or, lane, 4, s_t0)
    a.salu("s_mul_i32", s_t0, s_b, 48 * 8192)
    a.salu("s_lshl_b32", s_t1, s_kvh, 10)
    a.salu("s_add_u32", s_t0, s_t0, s_t1)
    a.salu("s_lshl_b32", s_t1, s_hh, 9)
    a.salu("s_add_u32", s_t0, s_t0, s_t1)
    a.salu("s_lshl_b32", s_t1, s_h, 8)
    a.salu("s_add_u32", s_t0, s_t0, s_t1)
    a.salu("s_lshl_b32", s_t1, s_kq, 6)
    a.salu("s_add_u32", s_t0, s_t0, s_t1)
    a.valu("v_lshlrev_b32", t0, 3, vg)
    a.valu("v_lshl_add_u32", v_os, vn, 13, t0)
    a.valu("v_add_u32", v_os, s_t0, v_os)
    a.salu("s_mul_i32", s_vd, s_w, 10240)

    k_tok = {}

    def issue_k(t):
        for p in range(4):
            k_tok[(t, p)] = a.bload(Kt[t][p], v_k, srd_k, s_k, off=64 * p)
        a.salu("s_add_u32", s_k, s_k, 4096)

    vd_count = [0]

    def issue_vdma(n):
        for _ in range(n):
            a.salu("s_mov_b32", M0, s_vd)
            a.bload_lds(v_vd[vd_count[0] & 1], srd_v, s_vd)
            a.salu("s_add_u32", s_vd, s_vd, 1024)
            vd_count[0] += 1

    stamp()
    a.wait(vm=xtok)
    a.barrier()
    stamp()
    x_tok = {}

    def read_x(ks):
        for qt in range(3):
            x_tok[ks] = a.dsread(Bbuf[ks & 1][qt], xa[ks & 3], off=qt * 16384 + (ks >> 2) * 256)

    read_x(0)
    for ks in range(16):
        a.wait(vm=wq_tok[ks])
        slot = ring[ks % RING]
        A = Abuf[ks & 1]
        for q in range(4):
            a.valu("v_perm_b32", A[0][q], slot[2 * q + 1], slot[2 * q], s_lo)
            a.valu("v_perm_b32", A[1][q], slot[2 * q + 1], slot[2 * q], s_hi)
        if ks + RING <= 15:
            issue_wq(ks + RING)
        elif ks == 10:
            issue_k(0); issue_k(1)
        elif ks == 11:
            issue_k(2); issue_k(3)
        elif ks == 12:
            issue_k(4); issue_k(5); issue_k(6)
        elif ks == 13:
            issue_k(7); issue_vdma(4)
        elif ks == 14:
            issue_vdma(6)
        if ks < 15:
            read_x(ks + 1)
        a.wait(ds=x_tok[ks])
        for c in range(2):
            for qt in range(3):
                a.mfma(accQ[c][qt], A[c], Bbuf[ks & 1][qt], 0 if ks == 0 else accQ[c][qt])
    stamp()
    qtmp = [tq[0], tq[1], G(32)]
    for qt in range(3):
        for r in range(4):
            a.valu("v_cvt_pk_bf16_f32", qtmp[qt][r], accQ[0][qt][r], accQ[1][qt][r])
        a.dswrite(v_qw, qtmp[qt], off=qt * 4096)
    a.wait_all(vm=False)
    a.barrier()
    stamp()
    a.salu("s_mul_i32", s_vd, s_w, 6144)
    a.salu("s_add_u32", s_vd, s_vd, 81920)
    issue_vdma(6)
    a.salu("s_mul_i32", s_t0, s_h, 48 * 256)
    a.salu("s_add_u32", s_t0, s_t0, QB)
    for p in range(4):
        a.valu("v_add_u32", t0, 4 * p, vg)
        a.valu("v_xor_b32", t0, t0, vn)
        a.valu("v_lshlrev_b32", t0, 4, t0)
        a.valu("v_lshl_add_u32", xa[p], vn, 8, t0)
        a.valu("v_add_u32", xa[p], s_t0, xa[p])
    qtok = None
    for qt in range(3):
        for p in range(4):
            qtok = a.dsread(Qf[qt][p], xa[p], off=qt * 4096)
    a.wait(ds=qtok)

    def do_max(kt):
        for qt in range(3):
            s = St[kt][qt]
            if kt == 0:
                a.valu("v_max3_f32", vmax[qt], s[0], s[1], s[2])
                a.valu("v_max_f32", vmax[qt], vmax[qt], s[3])
            else:
                a.valu("v_max3_f32", vmax[qt], vmax[qt], s[0], s[1])
                a.valu("v_max3_f32", vmax[qt], vmax[qt], s[2], s[3])

    for kt in range(8):
        for p in range(4):
            a.wait(vm=k_tok[(kt, p)])
            for qt in range(3):
                a.mfma(St[kt][qt], Kt[kt][p], Qf[qt][p], 0 if p == 0 else St[kt][qt])
            if p == 2 and kt > 0:
                do_max(kt - 1)
    do_max(7)
    stamp()
    for qt in range(3):
        a.dswrite(v_sw, vmax[qt], off=qt * 1024)
    a.wait_all()
    a.barrier()
    stamp()
    for qt in range(3):
        tok = None
        for i in range(4):
            tok = a.dsread(Vf[i], v_sr, off=qt * 1024 + 16 * i)
        a.wait(ds=tok)
        f = [Vf[i][j] for i in range(4) for j in range(4)]
        a.valu("v_max3_f32", vmc[qt], f[0], f[1], f[2])
        for i in range(3, 15, 2):
            a.valu("v_max3_f32", vmc[qt], vmc[qt], f[i], f[i + 1])
        a.valu("v_max_f32", vmc[qt], vmc[qt], f[15])
        a.valu("v_mul_f32", vmc[qt], s_c, vmc[qt])

    def exp_thunks(s):
        th = []
        for qt in range(3):
            for t in (2 * s, 2 * s + 1):
                for r in range(4):
                    x = St[t][qt][r]
                    th.append(lambda x=x, qt=qt: a.valu("v_fma_f32", x, x, s_c, -vmc[qt]))
                    th.append(lambda x=x: a.valu("v_exp_f32", x, x))
            for t in (2 * s, 2 * s + 1):
                for r in range(4):
                    x = St[t][qt][r]
                    if s == 0 and t == 0 and r == 0:
                        th.append(lambda x=x, qt=qt: a.valu("v_mov_b32", vls[qt], x))
                    else:
                        th.append(lambda x=x, qt=qt: a.valu("v_add_f32", vls[qt], vls[qt], x))
            d = St[2 * s][qt]
            e = St[2 * s + 1][qt]
            th.append(lambda d=d: a.valu("v_cvt_pk_bf16_f32", d[0], d[0], d[1]))
            th.append(lambda d=d: a.valu("v_cvt_pk_bf16_f32", d[1], d[2], d[3]))
            th.append(lambda d=d, e=e: a.valu("v_cvt_pk_bf16_f32", d[2], e[0], e[1]))
            th.append(lambda d=d, e=e: a.valu("v_cvt_pk_bf16_f32", d[3], e[2], e[3]))
        return th

    vtok = {}

    def rd_v(s, u):
        f = Vf[(8 * s + u) % 4]
        a.dsread(f.sub(0, 2), v_tr[u], off=(2 * s) * 4096, tr=True)
        vtok[(s, u)] = a.dsread(f.sub(2, 2), v_tr[u], off=(2 * s + 1) * 4096, tr=True)

    def pv_thunks(s):
        th = []
        for u in range(8):
            def f(u=u):
                a.wait(ds=vtok[(s, u)])
                fr = Vf[(8 * s + u) % 4]
                for qt in range(3):
                    a.mfma(Oacc[u][qt], fr, St[2 * s][qt], 0 if s == 0 else Oacc[u][qt])
                nx = 8 * s + u + 3
                if nx < 32:
                    rd_v(nx // 8, nx % 8)
            th.append(f)
        return th

    for th in exp_thunks(0):
        th()
    for i in range(3):
        rd_v(0, i)
    for s in range(4):
        pv = pv_thunks(s)
        ex = exp_thunks(s + 1) if s < 3 else []
        for th in interleave(pv, ex):
            th()
    stamp()
    a.barrier()
    for qt in range(3):
        a.dswrite(v_sw, vls[qt], off=qt * 1024)
    for d in range(1, 4):
        for dtl in range(2):
            for qt in range(3):
                a.dswrite(v_ow[d - 1], Oacc[2 * d + dtl][qt], off=(dtl * 3 + qt) * 1024)
    a.wait_all(vm=False)
    a.barrier()
    stamp()
    R = [G(32 + i) for i in range(18)]
    rtok = []
    for i in range(18):
        rtok.append(a.dsread(R[i], v_or, off=i * 1024))
    for qt in range(3):
        tok = None
        for i in range(4):
            tok = a.dsread(Vf[i], v_sr, off=qt * 1024 + 16 * i)
        a.wait(ds=tok)
        f = [Vf[i][j] for i in range(4) for j in range(4)]
        a.valu("v_add_f32", vls[qt], f[0], f[1])
        for i in range(2, 16):
            a.valu("v_add_f32", vls[qt], vls[qt], f[i])
        a.valu("v_rcp_f32", vls[qt], vls[qt])
    a.wait(ds=rtok[-1])
    for d in range(3):
        for dtl in range(2):
            for qt in range(3):
                src = R[d * 6 + dtl * 3 + qt]
                for r in range(4):
                    a.valu("v_add_f32", Oacc[dtl][qt][r], Oacc[dtl][qt][r], src[r])
    a.salu("s_mov_b32", s_t0, 0)
    for qt in range(3):
        for u in range(2):
            o = Oacc[u][qt]
            for r in range(4):
                a.valu("v_mul_f32", o[r], o[r], vls[qt])
            a.valu("v_cvt_pk_bf16_f32", o[0], o[0], o[1])
            a.valu("v_cvt_pk_bf16_f32", o[1], o[2], o[3])
            a.bstore(o.sub(0, 2), v_os, srd_o, s_t0, off=u * 32)
        if qt < 2:
            a.salu("s_add_u32", s_t0, s_t0, 16 * 8192)
    if dbg:
        a.wait_all()
        stamp()
        a.scmp("s_cmp_ge_u32", S(2), 8)
        a.branch("s_cbranch_scc1", f"{name}_end")
        a.salu("s_mov_b32", S(20), S(16))
        a.salu("s_and_b32", S(21), S(17), 0xFFFF)
        a.salu("s_mov_b32", S(22), 4096)
        a.salu("s_mov_b32", S(23), 0x00020000)
        a.salu("s_lshl_b32", s_t0, S(2), 3)
        a.salu("s_add_u32", s_t0, s_t0, s_w)
        a.salu("s_lshl_b32", s_t0, s_t0, 6)
        for i in range(nst[0]):
            a.valu("v_mov_b32", t0, S(60 + 2 * i))
            a.valu("v_mov_b32", t1, 4 * i)
            a.bstore(t0, t1, S(20, 4), s_t0)
        a.wait_all()
    a.label(f"{name}_end")
    a.raw("s_endpgm", "other")
    return a
```

```python
from dsl import Asm, V, S, M0

LDS_BYTES = 49152
RING = 5


def G(k, n=4):
    return V(4 * k, n)


def gen_k2(name, no_o=False, no_wo=False, no_mfma=False):
    a = Asm()
    tid, lane, vn, vg = V(0), V(1), V(2), V(3)
    v_wo = V(4)
    v_o = [V(5), V(6), V(7)]
    t0, t1 = V(8), V(9)
    v_pw, v_pr, v_out = V(10), V(11), V(12)
    wring = [V(16 + 8 * t, 8) for t in range(RING)]
    oring = [[G(14 + 3 * t + qt) for qt in range(3)] for t in range(RING)]
    Abuf = [[G(29 + 2 * b), G(30 + 2 * b)] for b in range(2)]
    acc = [[G(33 + 3 * c + qt) for qt in range(3)] for c in range(2)]

    srd_o, srd_wo, srd_out = S(20, 4), S(24, 4), S(28, 4)
    s_w, s_b, s_ct, s_lo, s_hi, s_wo, s_t0, s_t1 = (S(32 + i) for i in range(8))

    a.scmp("s_cmp_ge_u32", S(2), 256)
    a.branch("s_cbranch_scc1", f"{name}_end")
    a.raw("s_load_dwordx16 s[4:19], s[0:1], 0", "smem")
    a.valu("v_and_b32", lane, 63, tid)
    a.valu("v_lshrrev_b32", t0, 6, tid)
    a.valu("v_readfirstlane_b32", s_w, t0)
    a.valu("v_and_b32", vn, 15, lane)
    a.valu("v_lshrrev_b32", vg, 4, lane)
    a.salu("s_and_b32", s_b, S(2), 7)
    a.salu("s_lshl_b32", s_b, s_b, 1)
    a.salu("s_lshr_b32", s_t0, S(2), 3)
    a.salu("s_and_b32", s_t0, s_t0, 1)
    a.salu("s_add_u32", s_b, s_b, s_t0)
    a.salu("s_lshr_b32", s_ct, S(2), 4)
    a.salu("s_mov_b32", s_lo, 0x05040100)
    a.salu("s_mov_b32", s_hi, 0x07060302)
    a.raw("s_waitcnt lgkmcnt(0)", "wait")

    def mk_srd(srd, ptr, size):
        a.salu("s_mov_b32", srd[0], S(ptr))
        a.salu("s_and_b32", srd[1], S(ptr + 1), 0xFFFF)
        a.salu("s_mov_b32", srd[2], size)
        a.salu("s_mov_b32", srd[3], 0x00020000)

    mk_srd(srd_o, 18, 768 * 4096 * 2)
    mk_srd(srd_wo, 12, 4096 * 512 * 2)
    mk_srd(srd_out, 14, 768 * 512 * 2)

    a.valu("v_lshlrev_b32", v_wo, 13, vg)
    a.valu("v_lshl_add_u32", v_wo, vn, 2, v_wo)
    a.salu("s_lshl_b32", s_wo, s_w, 19)
    a.salu("s_lshl_b32", s_t0, s_ct, 6)
    a.salu("s_add_u32", s_wo, s_wo, s_t0)
    a.salu("s_mul_i32", s_t0, s_b, 48 * 8192)
    a.salu("s_lshl_b32", s_t1, s_w, 10)
    a.salu("s_add_u32", s_t0, s_t0, s_t1)
    a.valu("v_lshlrev_b32", t0, 4, vg)
    a.valu("v_lshl_add_u32", v_o[0], vn, 13, t0)
    a.valu("v_add_u32", v_o[0], s_t0, v_o[0])
    a.valu("v_add_u32", v_o[1], 16 * 8192, v_o[0])
    a.valu("v_add_u32", v_o[2], 32 * 8192, v_o[0])

    tok = {}

    def issue(ks):
        slot = ks % RING
        for qt in range(3):
            if not no_o:
                tok[ks] = a.bload(oring[slot][qt], v_o[qt], srd_o, 0, off=64 * ks)
        for j in range(8):
            if not no_wo:
                tok[ks] = a.bload(wring[slot][j], v_wo, srd_wo, s_wo)
                a.salu("s_add_u32", s_wo, s_wo, 1024 if j < 7 else 25 * 1024)

    for ks in range(RING):
        issue(ks)
    a.salu("s_mul_i32", s_t0, s_w, 6144)
    a.valu("v_lshl_add_u32", v_pw, lane, 4, s_t0)
    a.salu("s_lshl_b32", s_t0, s_w, 10)
    a.valu("v_lshl_add_u32", v_pr, lane, 4, s_t0)
    a.salu("s_mul_i32", s_t0, s_b, 48 * 1024)
    a.salu("s_lshl_b32", s_t1, s_w, 14)
    a.salu("s_add_u32", s_t0, s_t0, s_t1)
    a.salu("s_lshl_b32", s_t1, s_ct, 6)
    a.salu("s_add_u32", s_t0, s_t0, s_t1)
    a.valu("v_lshlrev_b32", t0, 4, vg)
    a.valu("v_lshl_add_u32", v_out, vn, 10, t0)
    a.valu("v_add_u32", v_out, s_t0, v_out)

    for ks in range(16):
        a.wait(vm=tok[ks])
        slot = ks % RING
        A = Abuf[ks & 1]
        for q in range(4):
            a.valu("v_perm_b32", A[0][q], wring[slot][2 * q + 1], wring[slot][2 * q], s_lo)
            a.valu("v_perm_b32", A[1][q], wring[slot][2 * q + 1], wring[slot][2 * q], s_hi)
        for c in range(2):
            for qt in range(3):
                if not no_mfma or ks == 15:
                    a.mfma(acc[c][qt], A[c], oring[slot][qt], 0 if (ks == 0 or no_mfma) else acc[c][qt])
        if ks + RING <= 15:
            issue(ks + RING)
    for c in range(2):
        for qt in range(3):
            a.dswrite(v_pw, acc[c][qt], off=(c * 3 + qt) * 1024)
    a.wait_all(vm=False)
    a.barrier()
    a.scmp("s_cmp_ge_u32", s_w, 3)
    a.branch("s_cbranch_scc1", f"{name}_end")
    R = [G(14 + i) for i in range(16)]
    tk = None
    for w in range(8):
        for c in range(2):
            tk = a.dsread(R[2 * w + c], v_pr, off=w * 6144 + c * 3072)
    a.wait(ds=tk)
    for w in range(1, 8):
        for c in range(2):
            for r in range(4):
                a.valu("v_add_f32", R[c][r], R[c][r], R[2 * w + c][r])
    o = G(33)
    for r in range(4):
        a.valu("v_cvt_pk_bf16_f32", o[r], R[0][r], R[1][r])
    a.bstore(o, v_out, srd_out, 0)
    a.label(f"{name}_end")
    a.raw("s_endpgm", "other")
    return a
```

```python
import sys, os
sys.path.insert(0, os.path.dirname(os.path.abspath(__file__)))
import importlib, gen
mod = importlib.import_module(sys.argv[1] if len(sys.argv) > 1 else "k3")
tag = sys.argv[1] if len(sys.argv) > 1 else "k3"
for dbg, suf in ((None, ""), (True, "_dbg")):
    ks = [("gqa_fused_kernel", mod.gen("gqa_fused", dbg=dbg), 256, 512, mod.LDS_BYTES, 256)]
    open(f"gen/{tag}{suf}.s", "w").write(gen.build(ks))
```

```python
import sys, os
sys.path.insert(0, os.path.dirname(os.path.abspath(__file__)))
from dsl import Asm, V, S, M0
import gen

def mb5(name, nw=8, fl="", vreg=False, contig=False, delay=0):
    a = Asm()
    tid, lane, voff, t0, t1 = V(0), V(1), V(4), V(5), V(6)
    srd_k, srd_v = S(20, 4), S(24, 4)
    s_w, s_off, s_t0, s_kvh, s_hh, s_b = S(32), S(33), S(34), S(35), S(36), S(37)
    def st(i):
        a.raw("s_memrealtime s[58:59]", "smem")
        a.raw("s_waitcnt lgkmcnt(0)", "wait")
        a.salu("s_mov_b32", S(72 + i), S(58))
    a.scmp("s_cmp_ge_u32", S(2), 256)
    a.branch("s_cbranch_scc1", f"{name}_end")
    st(0)
    a.raw("s_load_dwordx16 s[4:19], s[0:1], 0", "smem")
    a.valu("v_and_b32", lane, 63, tid)
    a.valu("v_lshrrev_b32", t0, 6, tid)
    a.valu("v_readfirstlane_b32", s_w, t0)
    a.valu("v_lshlrev_b32", voff, 4, lane)
    a.salu("s_and_b32", s_kvh, S(2), 7)
    a.salu("s_lshr_b32", s_t0, S(2), 3)
    a.salu("s_and_b32", s_hh, s_t0, 1)
    a.salu("s_lshr_b32", s_b, s_t0, 1)
    a.raw("s_waitcnt lgkmcnt(0)", "wait")
    a.salu("s_lshl_b32", s_t0, s_b, 3)
    a.salu("s_add_u32", s_t0, s_t0, s_kvh)
    a.salu("s_lshl_b32", s_t0, s_t0, 17)
    for srd, ptr in ((srd_k, 6), (srd_v, 8)):
        a.salu("s_add_u32", srd[0], S(ptr), s_t0)
        a.salu("s_addc_u32", srd[1], S(ptr + 1), 0)
        a.salu("s_and_b32", srd[1], srd[1], 0xFFFF)
        a.salu("s_mov_b32", srd[2], 131072)
        a.salu("s_mov_b32", srd[3], 0x00020000)
    for i in range(1, 5):
        a.salu("s_mov_b32", S(72 + i), 0)
    a.barrier()
    st(1)
    a.scmp("s_cmp_ge_u32", s_w, nw)
    a.branch("s_cbranch_scc1", f"{name}_out")
    per = 128 // nw
    n = 0
    for ti, srd in enumerate((srd_k, srd_v)):
        if contig:
            a.salu("s_mul_i32", s_off, s_w, per * 1024)
        else:
            a.salu("s_mul_i32", s_off, s_w, 1024)
        for i in range(per):
            if vreg and ti == 1:
                a.bload(V(16 + 4 * (i % 56), 4), voff, srd, s_off, flags=fl)
            else:
                a.salu("s_add_u32", M0, s_off, 0)
                a.bload_lds(voff, srd, s_off, flags=fl)
            a.salu("s_add_u32", s_off, s_off, 1024 if contig else nw * 1024)
            n += 1
            if n == 60:
                a.raw("s_waitcnt vmcnt(30)", "wait")
                n = 30
        st(2 + ti)
    a.wait_all()
    st(4)
    a.label(f"{name}_out")
    a.salu("s_add_u32", S(20), S(18), 64 << 20)
    a.salu("s_addc_u32", S(21), S(19), 0)
    a.salu("s_and_b32", S(21), S(21), 0xFFFF)
    a.salu("s_mov_b32", S(22), 131072)
    a.salu("s_mov_b32", S(23), 0x00020000)
    a.salu("s_lshl_b32", S(51), S(2), 3)
    a.salu("s_add_u32", S(51), S(51), s_w)
    a.salu("s_lshl_b32", S(51), S(51), 6)
    for i in range(16):
        a.valu("v_mov_b32", t0, S(72 + min(i, 4)))
        a.valu("v_mov_b32", t1, 4 * i)
        a.bstore(t0, t1, S(20, 4), S(51))
    a.wait_all()
    a.label(f"{name}_end")
    a.raw("s_endpgm", "other")
    return a

for tag, kw in [("8", {}), ("8nt", dict(fl="nt")), ("4", dict(nw=4)), ("4nt", dict(nw=4, fl="nt")), ("4c", dict(nw=4, contig=True)), ("4cnt", dict(nw=4, contig=True, fl="nt")), ("4cv", dict(nw=4, contig=True, vreg=True, fl="nt"))]:
    ks = [("mb5_kernel", mb5("mb5", **kw), 256, 512, 131072, 256)]
    open(f"mb5_{tag}.s", "w").write(gen.build(ks))
```
